```python
import torch

def _softmax(x, axis=-1):
    return torch.softmax(x, dim=axis)
def _gelu(x):
    return torch.nn.functional.gelu(x, approximate="tanh")
def _silu(x):
    return torch.nn.functional.silu(x)
def _sigmoid(x):
    return torch.sigmoid(x)
def _layernorm(x, axis=-1, eps=1e-5):
    m = x.mean(dim=axis, keepdim=True)
    v = x.var(dim=axis, keepdim=True, unbiased=False)
    return (x - m) / torch.sqrt(v + eps)
def _scatter_add(tgt, idx, src, axis=0):
    return tgt.clone().index_add_(axis, idx, src)
def _segment_sum(src, seg, n):
    out = torch.zeros((n,) + src.shape[1:], dtype=src.dtype)
    return out.index_add_(0, seg, src)
def _pad(x, pw):
    flat = tuple(v for pair in reversed(pw) for v in pair)
    return torch.nn.functional.pad(x, flat)

kernel_name = 'concat_heads__gqa_block_cached__mha_block_cached__near_ridge'

def setup_inputs():

    _w = (lambda a: (lambda t: t.to(torch.bfloat16) if t.is_floating_point() else t)(torch.as_tensor(a)))
    def _A_setup():
        B, Sq, D = 8, 112, 576
        Hq, Hkv, Sk, Dh = 32, 16, 1024, 128
        assert Hq % Hkv == 0, (Hq, Hkv)
        return {
            "x": _w((lambda *s: torch.randn(*s, dtype=torch.bfloat16) * 0.8)(B, Sq, D)),
            "k_cache": _w((lambda *s: torch.randn(*s, dtype=torch.bfloat16) * 0.8)(B, Hkv, Sk, Dh)),
            "v_cache": _w((lambda *s: torch.randn(*s, dtype=torch.bfloat16) * 0.05)(B, Hkv, Sk, Dh)),
            "wq": _w((lambda *s: torch.randn(*s, dtype=torch.bfloat16) * 0.8)(D, Hq * Dh) * (D ** -0.5)),
            "wo": _w((lambda *s: torch.randn(*s, dtype=torch.bfloat16) * 0.05)(Hq * Dh, D) * ((Hq * Dh) ** -0.5)),
        }
    _A_in = _A_setup()

    def _B_setup():
        B, Sq, D = 8, 112, 576
        H, Sk, Dh = 32, 1024, 128
        return {
            "x": _w((lambda *s: torch.randn(*s, dtype=torch.bfloat16) * 0.8)(B, Sq, D)),
            "k_cache": _w((lambda *s: torch.randn(*s, dtype=torch.bfloat16) * 0.8)(B, H, Sk, Dh)),
            "v_cache": _w((lambda *s: torch.randn(*s, dtype=torch.bfloat16) * 0.05)(B, H, Sk, Dh)),
            "wq": _w((lambda *s: torch.randn(*s, dtype=torch.bfloat16) * 0.8)(D, H * Dh) * (D ** -0.5)),
            "wo": _w((lambda *s: torch.randn(*s, dtype=torch.bfloat16) * 0.05)(H * Dh, D) * ((H * Dh) ** -0.5)),
        }
    _B_in = _B_setup()

    return {
        "A_x": _A_in["x"],
        "A_k_cache": _A_in["k_cache"],
        "A_v_cache": _A_in["v_cache"],
        "A_wq": _A_in["wq"],
        "A_wo": _A_in["wo"],
        "B_x": _B_in["x"],
        "B_k_cache": _B_in["k_cache"],
        "B_v_cache": _B_in["v_cache"],
        "B_wq": _B_in["wq"],
        "B_wo": _B_in["wo"],
    }

def reference(A_x, A_k_cache, A_v_cache, A_wq, A_wo, B_x, B_k_cache, B_v_cache, B_wq, B_wo):
    def _A_ref(x, k_cache, v_cache, wq, wo):
        B, Sq, D = x.shape
        Hq, Dh = 32, 128
        Hkv = k_cache.shape[1]
        rep = Hq // Hkv
        q = (lambda x, *d: x.permute(*d))((x @ wq).reshape(B, Sq, Hq, Dh), 0, 2, 1, 3)
        k = (lambda x, n, axis: torch.repeat_interleave(x, n, dim=axis))(k_cache, rep, axis=1)
        v = (lambda x, n, axis: torch.repeat_interleave(x, n, dim=axis))(v_cache, rep, axis=1)
        scores = torch.einsum("bhqd,bhkd->bhqk", q, k) * (Dh ** -0.5)
        p = _softmax(scores, axis=-1)
        o = torch.einsum("bhqk,bhkd->bhqd", p, v)
        return (lambda x, *d: x.permute(*d))(o, 0, 2, 1, 3).reshape(B, Sq, Hq * Dh) @ wo

    def _B_ref(x, k_cache, v_cache, wq, wo):
        B, Sq, D = x.shape
        H, Dh = 32, 128
        q = (lambda x, *d: x.permute(*d))((x @ wq).reshape(B, Sq, H, Dh), 0, 2, 1, 3)
        scores = torch.einsum("bhqd,bhkd->bhqk", q, k_cache) * (Dh ** -0.5)
        p = _softmax(scores, axis=-1)
        o = torch.einsum("bhqk,bhkd->bhqd", p, v_cache)
        return (lambda x, *d: x.permute(*d))(o, 0, 2, 1, 3).reshape(B, Sq, H * Dh) @ wo

    a = _A_ref(A_x, A_k_cache, A_v_cache, A_wq, A_wo)
    b = _B_ref(B_x, B_k_cache, B_v_cache, B_wq, B_wo)
    return torch.concatenate([a, b], axis=-1)
```

```python
NAME = "concat_heads__gqa_block_cached__mha_block_cached__near_ridge"
class Asm:
    def __init__(self): self.l = []
    def __call__(self, s):
        for x in s.split("\n"):
            x = x.strip()
            if x: self.l.append(("" if x.endswith(":") else "  ") + x)
    def text(self): return "\n".join(self.l) + "\n"
def kernel_begin(a, label):
    a(f".globl {label}\n.p2align 8\n.type {label},@function\n{label}:")
def descriptor(label, vgpr=512, acc=256, sgpr=102):
    return f""".p2align 6
.amdhsa_kernel {label}
  .amdhsa_next_free_vgpr {vgpr}
  .amdhsa_next_free_sgpr {sgpr}
  .amdhsa_accum_offset {acc}
  .amdhsa_group_segment_fixed_size 0
  .amdhsa_kernarg_size 104
  .amdhsa_user_sgpr_count 2
  .amdhsa_user_sgpr_kernarg_segment_ptr 1
  .amdhsa_system_sgpr_workgroup_id_x 1
.end_amdhsa_kernel
"""
def finish(launches, body, descs):
    h = ""
    if len(launches) == 1 and launches[0][0] == NAME + "_kernel":
        _, g, b, l = launches[0]
        h += f"; @launch grid=({g},1,1) block=({b},1,1) lds={l}\n"
    else:
        for k, g, b, l in launches: h += f"; @launch kernel={k} grid=({g},1,1) block=({b},1,1) lds={l}\n"
    return h + '.amdgcn_target "amdgcn-amd-amdhsa--gfx950"\n.text\n' + body + '.section .rodata,"a"\n' + "".join(descs)
def stamp_setup(a, off, wsreg, wg="s2"):
    a(f"""s_lshl_b32 s94, {wg}, 6
    s_add_u32 s94, s94, {off}
    s_add_u32 s92, s{wsreg}, s94
    s_addc_u32 s93, s{wsreg+1}, 0
    s_mov_b32 s94, 64
    s_mov_b32 s95, 0x20000""")
def stamp(a, i, t):
    a(f"""s_memrealtime s[90:91]
    s_waitcnt lgkmcnt(0)
    v_mov_b32 v{t}, s90
    v_mov_b32 v{t+1}, s91
    v_mov_b32 v{t+2}, {8*i}
    buffer_store_dwordx2 v[{t}:{t+1}], v{t+2}, s[92:95], 0 offen""")
```

```python
import re, sys
def regs(tok):
    tok = tok.strip().lstrip("-")
    m = re.fullmatch(r"([vas])(\d+)", tok)
    if m: return {(m[1], int(m[2]))}
    m = re.fullmatch(r"([vas])\[(\d+):(\d+)\]", tok)
    if m: return {(m[1], i) for i in range(int(m[2]), int(m[3]) + 1)}
    if tok in ("vcc", "m0", "exec"): return {(tok, 0)}
    return set()
TRANS = ("v_exp_", "v_log_", "v_rcp_", "v_rsq_", "v_sqrt_")
def parse(line):
    line = line.split(";")[0].strip()
    if not line or line.endswith(":") or line.startswith("."): return None
    p = line.split(None, 1); op = p[0]
    ops = [x.strip() for x in p[1].split(",")] if len(p) > 1 else []
    if ops: ops[-1] = ops[-1].split()[0] if ops[-1].split() else ops[-1]
    R = [regs(o) for o in ops]; d = dict(op=op, line=line, w=set(), r=set(), ws=1, kind="other")
    if op == "s_nop": d["ws"] = int(ops[0], 0) + 1
    elif op.startswith("v_mfma"):
        d.update(kind="mfma", w=R[0], ab=R[1] | R[2], c=R[3], r=R[1] | R[2] | R[3], passes=8 if "32x32" in op else 4)
    elif op.startswith("v_"):
        d["kind"] = "valu"; d["w"] = set(R[0]); d["r"] = set().union(*R[1:]) if len(R) > 1 else set()
        if op.startswith("v_permlane"): d["w"] = R[0] | R[1]; d["r"] = R[0] | R[1]
        if op.startswith(("v_fmac",)): d["r"] |= R[0]
        if op.startswith(("v_add_co", "v_addc_co")): d["w"] |= R[1]
    elif op.startswith("ds_read"): d.update(kind="ds", w=R[0], r=R[1])
    elif op.startswith("ds_write"): d.update(kind="ds", r=set().union(*R))
    elif op.startswith(("buffer_load", "global_load")):
        if line.endswith(" lds"): d.update(kind="vm", r=set().union(*R) | {("m0", 0)}, dma=True)
        else: d.update(kind="vm", w=R[0], r=set().union(*R[1:]))
    elif op.startswith(("buffer_store", "buffer_atomic")): d.update(kind="vm", r=set().union(*R), data=R[0] if "x4" in op or "x3" in op else set())
    elif op.startswith("s_"):
        d["kind"] = "salu"
        if R and not op.startswith(("s_cmp", "s_cbranch", "s_waitcnt")): d["w"] = R[0]; d["r"] = set().union(*R[1:]) if len(R) > 1 else set()
    return d
def check(lines):
    I = [x for x in map(parse, lines) if x]; bad = 0
    for i, c in enumerate(I):
        dist = 0
        for j in range(i - 1, max(-1, i - 24), -1):
            p = I[j]; need = 0
            if p["op"] in ("s_endpgm", "s_branch"): break
            if p["kind"] == "mfma":
                big = {8: 12, 4: 8}[p["passes"]]
                if c["kind"] == "mfma":
                    if p["w"] & c["ab"]: need = big
                    elif p["w"] & c["c"] and not (p["w"] == c["c"] and p["passes"] == c["passes"]): need = big - 2
                    elif p["w"] & c["w"] and p["w"] != c["c"]: need = big - 2
                elif c["kind"] in ("valu", "ds", "vm"):
                    if p["w"] & (c["r"] | c["w"]): need = big
                    elif c["kind"] == "valu" and p["c"] & c["w"]: need = {8: 7, 4: 3}[p["passes"]]
            elif p["kind"] == "valu":
                vw = {x for x in p["w"] if x[0] in "va" and len(x[0]) == 1}; sw = p["w"] - vw
                if c["kind"] == "mfma" and vw & c["r"]: need = 2
                if c["kind"] == "valu":
                    if p["op"].startswith(TRANS) and not c["op"].startswith(TRANS) and vw & c["r"]: need = 1
                    if c["op"].startswith("v_permlane") and vw & c["r"]: need = 2
                    if c["op"].startswith(("v_readfirstlane", "v_readlane")) and vw & c["r"]: need = 1
                    if sw & c["r"]: need = 2
                if c["kind"] == "vm" and sw & c["r"]: need = 5
                if c["kind"] == "salu" and sw & c["r"]: need = 1
            elif p["kind"] == "salu":
                if ("m0", 0) in p["w"] and c.get("dma"): need = 1
            elif p["kind"] == "vm":
                if p.get("data") and p["data"] & c["w"]: need = 2
            if need > dist:
                print(f"HAZARD need {need} have {dist}: [{p['line']}] -> [{c['line']}]"); bad += 1
            dist += p["ws"]
    return bad
if __name__ == "__main__":
    print("hazards:", check(open(sys.argv[1]).read().split("\n")))
```

```python
import sys, struct
from asmlib import *
import hazard
OPT = dict(stamps=0, kvfl="nt", wqfl="", xfl="", ofl="", wofl="", o2fl="", D2=7, touch=0, early=0, only=0)
for x in sys.argv[2:]:
    k, v = x.split("="); OPT[k] = type(OPT[k])(v.replace("_", " ").strip() if isinstance(OPT[k], str) else v)
ST = OPT["stamps"]
def f2u(x): return "0x%08x" % struct.unpack("<I", struct.pack("<f", x))[0]
MF = "v_mfma_f32_32x32x16_bf16"
def vr(b, n): return f"v[{b}:{b+n-1}]"
def ar(b, n): return f"a[{b}:{b+n-1}]"
class Q:
    def __init__(s): s.q = []
    def issue(s, tag): s.q.append(tag)
    def need(s, tags):
        idx = [i for i, t in enumerate(s.q) if t in tags]
        if not idx: return None
        n = len(s.q) - 1 - max(idx); s.q = s.q[max(idx) + 1:]; return n
OBR = 28 * 256 * 1024
S0, S1, NM0, NM1, P0, P1, L0, L1 = 128, 144, 160, 176, 192, 200, 208, 209
KA, KAH, VA, VAH, DM, WD, XD, WR, XR, LANE, T = 210, 218, 226, 230, 234, 238, 242, 246, 250, 254, 255
QA, KF, VF = 0, 64, 96
WLDS, XLDS = 65536, 131072
def k1(a, label):
    kernel_begin(a, label)
    a(f"""s_cmp_ge_u32 s2, 256
    s_cbranch_scc1 L1_end
    s_load_dwordx16 s[36:51], s[0:1], 0
    s_load_dwordx4 s[52:55], s[0:1], 64
    s_load_dwordx2 s[56:57], s[0:1], 96
    v_lshrrev_b32 v1, 6, v0
    v_and_b32 v{LANE}, 63, v0
    v_readfirstlane_b32 s20, v1
    s_and_b32 s25, s2, 7
    s_lshr_b32 s23, s2, 3
    s_and_b32 s23, s23, 1
    s_lshr_b32 s29, s2, 4
    s_and_b32 s29, s29, 1
    s_lshr_b32 s24, s2, 5
    s_lshl_b32 s25, s25, 1
    s_add_u32 s25, s25, s29
    s_lshr_b32 s21, s20, 1
    s_and_b32 s22, s20, 1""")
    a(f"""v_and_b32 v1, 15, v{LANE}
    v_lshrrev_b32 v2, 4, v{LANE}
    v_and_b32 v3, 31, v{LANE}
    v_lshrrev_b32 v4, 5, v{LANE}""")
    a("s_lshl_b32 s29, s20, 16")
    for p in range(4):
        a(f"""v_add_u32 v5, {2*(p%2)}, v4
        v_lshlrev_b32 v5, 2, v5
        v_xor_b32 v5, v5, v3
        v_lshlrev_b32 v5, 4, v5
        v_lshl_add_u32 v5, v4, 13, v5
        v_add_u32 v5, {p*16384 - p*1024}, v5
        v_add_u32 v{WD+p}, s29, v5""")
    a(f"""s_mul_i32 s29, s20, {32*1152}
    v_lshrrev_b32 v6, 3, v{LANE}
    v_mul_u32_u24 v6, 1152, v6
    v_add_u32 v6, s29, v6
    v_and_b32 v7, 7, v{LANE}""")
    for p in range(4):
        a(f"""v_add_u32 v5, {4*(p%2)}, v2
        v_xor_b32 v5, v5, v7
        v_lshl_add_u32 v5, v5, 4, v6
        v_add_u32 v{XD+p}, {p*8*1152 - p*1024}, v5""")
    a("s_waitcnt lgkmcnt(0)")
    if ST: stamp_setup(a, 0x2000000, 56); stamp(a, 0, 10)
    a(f"""s_cmp_eq_u32 s23, 0
    s_cselect_b32 s4, s36, s46
    s_cselect_b32 s5, s37, s47
    s_cselect_b32 s8, s42, s52
    s_cselect_b32 s9, s43, s53
    s_cselect_b32 s38, s38, s48
    s_cselect_b32 s39, s39, s49
    s_cselect_b32 s40, s40, s50
    s_cselect_b32 s41, s41, s51
    s_mul_i32 s29, s24, {112*1152}
    s_add_u32 s4, s4, s29
    s_addc_u32 s5, s5, 0
    s_mov_b32 s6, {112*1152}
    s_mov_b32 s7, 0x20000
    s_lshl_b32 s29, s25, 9
    s_add_u32 s8, s8, s29
    s_addc_u32 s9, s9, 0
    s_sub_u32 s10, {576*8192}, s29
    s_mov_b32 s11, 0x20000
    s_lshl_b32 s58, s20, 12""")
    vm = Q()
    def dmaW(st):
        r = [f"s_add_u32 m0, s58, {WLDS + (st%4)*16384}\ns_mov_b32 s29, {st*32*8192}"]
        for p in range(4):
            r.append(f"buffer_load_dwordx4 v{WD+p}, s[8:11], s29 offen offset:{p*1024} {OPT['wqfl']} lds"); vm.issue(("W", st))
        r[1] = r[0] + "\n" + r[1]; return r[1:]
    def dmaX(c):
        r = [f"s_add_u32 m0, s58, {XLDS + (c%2)*16384}\ns_movk_i32 s29, {c*128}"]
        for p in range(4):
            r.append(f"buffer_load_dwordx4 v{XD+p}, s[4:7], s29 offen offset:{p*1024} {OPT['xfl']} lds"); vm.issue(("X", c))
        r[1] = r[0] + "\n" + r[1]; return r[1:]
    for x in dmaX(0) + dmaW(0) + dmaW(1) + dmaX(1) + dmaW(2) + dmaW(3): a(x)
    a(f"""s_lshl_b32 s29, s24, 4
    s_add_u32 s29, s29, s25
    s_lshl_b32 s30, s29, 1
    s_add_u32 s30, s30, s21
    s_cmp_eq_u32 s23, 0
    s_cselect_b32 s29, s29, s30
    s_lshl_b32 s29, s29, 18
    s_cmp_eq_u32 s22, 0
    s_cselect_b32 s12, s38, s40
    s_cselect_b32 s13, s39, s41
    s_add_u32 s12, s12, s29
    s_addc_u32 s13, s13, 0
    s_mov_b32 s14, 0x40000
    s_mov_b32 s15, 0x20000
    s_mul_i32 s29, s23, {OBR}
    s_lshl_b32 s30, s25, 1
    s_add_u32 s30, s30, s21
    s_lshl_b32 s30, s30, 13
    s_add_u32 s29, s29, s30
    s_add_u32 s16, s56, s29
    s_addc_u32 s17, s57, 0
    s_sub_u32 s18, {2*OBR}, s29
    s_mov_b32 s19, 0x20000
    s_mov_b32 s31, 0""")
    a(f"""s_lshl_b32 s29, s21, 14
    s_lshl_b32 s30, s21, 12
    s_cmp_eq_u32 s23, 0
    s_cselect_b32 s28, s30, s29
    s_cselect_b32 s59, s30, 0
    s_cselect_b32 s60, 0, s29
    s_lshl_b32 s29, s22, 13
    s_add_u32 s28, s28, s29""")
    a("s_cmp_eq_u32 s22, 0\ns_cselect_b64 vcc, -1, 0\nv_lshlrev_b32 v6, 2, v2")
    for j in range(4):
        a(f"""v_add_u32 v5, {4*j}, v2
        v_cndmask_b32 v5, v6, v5, vcc
        v_xor_b32 v5, v5, v1
        v_lshlrev_b32 v5, 4, v5
        v_lshl_add_u32 v{DM+j}, v2, 8, v5""")
    a("v_lshl_add_u32 v6, v3, 8, s60")
    for ks in range(8):
        a(f"""v_add_u32 v5, {2*ks}, v4
        v_xor_b32 v5, v5, v1
        v_lshl_add_u32 v{KA+ks}, v5, 4, v6
        v_add_u32 v{KAH+ks}, 0x10000, v{KA+ks}""")
    a(f"""v_lshrrev_b32 v7, 2, v1
    v_and_b32 v8, 1, v2
    v_and_b32 v9, 3, v1
    v_lshl_add_u32 v6, v4, 2, v7
    v_lshl_add_u32 v6, v6, 8, s60
    v_lshl_add_u32 v6, v8, 5, v6
    v_lshl_add_u32 v6, v9, 3, v6
    v_add_u32 v6, 8192, v6""")
    for dt in range(4):
        a(f"""v_xor_b32 v5, {dt}, v7
        v_lshl_add_u32 v{VA+dt}, v5, 6, v6
        v_add_u32 v{VAH+dt}, 0x10000, v{VA+dt}""")
    a(f"""v_lshrrev_b32 v5, 1, v9
    v_and_b32 v9, 1, v9
    v_lshl_add_u32 v9, v9, 1, v5
    s_lshl_b32 s29, s21, 8
    s_add_u32 s29, s29, {WLDS}
    v_lshl_add_u32 v6, v4, 3, v7
    v_lshl_add_u32 v6, v6, 9, s29
    v_lshl_add_u32 v6, v8, 5, v6
    v_lshl_add_u32 v6, v9, 3, v6""")
    for dt in range(4):
        a(f"v_xor_b32 v5, {dt}, v7\nv_lshl_add_u32 v{WR+dt}, v5, 6, v6")
    a(f"""s_lshl_b32 s29, s22, 13
    s_add_u32 s29, s29, {XLDS}
    v_lshl_add_u32 v6, v3, 7, s29
    v_lshrrev_b32 v7, 1, v1""")
    for k in range(4):
        a(f"v_add_u32 v5, {2*k}, v4\nv_xor_b32 v5, v5, v7\nv_lshl_add_u32 v{XR+k}, v5, 4, v6")
    a("s_cmp_eq_u32 s23, 0\ns_cbranch_scc1 L1_A")
    q0 = list(vm.q)
    for br in (1, 0):
        vm.q = list(q0)
        if br == 0: a("L1_A:")
        k1_body(a, br, vm, dmaW, dmaX)
    a("L1_end:\ns_endpgm")

def k1_body(a, br, vm, dmaW, dmaX):
    n = 8 if br else 4; SL = 32768 if br else 16384; tg = "B" if br else "A"
    def dmaKV(guard=True):
        r = []
        for j in range(n):
            pre = ""
            if j == 0:
                pre = "s_add_u32 m0, s27, s28\n"
                if guard: pre = "s_cmp_lt_u32 s26, 0x40000\ns_cselect_b32 s14, 0x40000, 0\n" + pre
                pre += f"s_add_u32 s27, s27, {SL}\n"
            if j == 4: pre = "s_add_u32 m0, m0, 4096\ns_add_u32 s26, s26, 4096\n"
            post = ""
            if j == 0: post = f"\ns_and_b32 s27, s27, {4*SL-1}"
            if j == n - 1: post += f"\ns_add_u32 s26, s26, {4096 if br else 8192}"
            r.append(pre + f"buffer_load_dwordx4 v{DM+j%4}, s[12:15], s26 offen offset:{(j%4)*1024} {OPT['kvfl']} lds" + post)
            vm.issue("KV")
        return r
    def rdK(sl, ks):
        hi = br and sl >= 2
        return f"ds_read_b128 {ar(KF+4*ks,4)}, v{(KAH if hi else KA)+ks} offset:{(sl-2*hi)*SL}"
    def rdV(sl, f, u):
        kk, dt = f // 4, f % 4; hi = br and sl >= 2
        return f"ds_read_b64_tr_b16 {ar(VF+4*f+2*u,2)}, v{(VAH if hi else VA)+dt} offset:{(sl-2*hi)*SL + (16*kk+8*u)*256}"
    def qreads(k):
        st, b = k // 2, (KF if k % 2 == 0 else VF); r = []
        for qb in range(2): r.append(f"ds_read_b128 {ar(b+16+4*qb,4)}, v{XR+k%4} offset:{((k//4)%2)*16384 + qb*4096}")
        for dt in range(4):
            for u in range(2): r.append(f"ds_read_b64_tr_b16 {ar(b+4*dt+2*u,2)}, v{WR+dt} offset:{(st%4)*16384 + (16*(k%2)+4*u)*512}")
        return r
    a("s_mov_b32 s26, s59\ns_mov_b32 s27, 0")
    a(f"s_waitcnt vmcnt({vm.need({('W',0),('X',0)})})\ns_barrier")
    if ST: stamp(a, 1, 10); vm.issue("st")
    for x in qreads(0): a(x)
    for k in range(36):
        b = KF if k % 2 == 0 else VF; fill = []
        if k % 2 == 1:
            st = (k + 1) // 2
            w = vm.need({('W', st), ('X', st // 2)}) if st < 18 else None
            a(f"s_waitcnt lgkmcnt(0)" + (f" vmcnt({w})" if w is not None else "") + "\ns_barrier")
            if st % 2 == 0 and st // 2 + 1 < 9: fill += dmaX(st // 2 + 1)
            if st + 3 < 18: fill += dmaW(st + 3)
            if st in (15, 16, 18): fill += dmaKV(False)
        else: a("s_waitcnt lgkmcnt(0)")
        rd = qreads(k + 1) if k < 35 else []
        for g in range(8):
            dt, qb = g // 2, g % 2; acc = vr(qb*64 + dt*16, 16)
            a(f"{MF} {acc}, {ar(b+4*dt,4)}, {ar(b+16+4*qb,4)}, {acc if k else 0}")
            for x in rd[2*g:2*g+2]: a(x)
            for x in fill[g:g+1]: a(x)
    a(f"s_cmp_lg_u32 s22, 0\ns_cbranch_scc1 L1_{tg}_nok3")
    for x in dmaKV(False): a(x)
    a(f"L1_{tg}_nok3:\ns_mov_b32 s29, {f2u(1.4426950408889634 * 128 ** -0.5)}\ns_nop 7")
    if ST: stamp(a, 2, WD)
    for dt in range(4):
        for qb in range(2):
            b = qb*64 + dt*16
            for e in range(16): a(f"v_mul_f32 v{b+e}, s29, v{b+e}")
            for e in range(8): a(f"v_cvt_pk_bf16_f32 v{b+e}, v{b+2*e}, v{b+2*e+1}")
            for e in range(8): a(f"v_accvgpr_write_b32 a{QA + qb*32 + dt*8 + e}, v{b+e}")
    def qk_plain():
        for ks in range(8): a(rdK(0, ks))
        a("s_waitcnt lgkmcnt(0)")
        for qb in range(2):
            for ks in range(8):
                s = vr(S0+16*qb, 16); a(f"{MF} {s}, {ar(KF+4*ks,4)}, {ar(QA+32*qb+4*ks,4)}, {s if ks else 0}")
    def maxacc(first):
        for qb in range(2):
            s, m = S0 + 16*qb, WD + qb
            if qb == 1: a("s_nop 3")
            a(f"v_max_f32 v{m}, v{s}, v{s+1}" if first else f"v_max3_f32 v{m}, v{s}, v{s+1}, v{m}")
            for e in range(2, 16, 2): a(f"v_max3_f32 v{m}, v{s+e}, v{s+e+1}, v{m}")
    a(f"s_waitcnt vmcnt({3*n})\ns_barrier")
    if ST: stamp(a, 3, WD+4)
    qk_plain()
    for i in range(128): a(f"v_mov_b32 v{i}, 0")
    maxacc(True)
    a(f"L1_{tg}_havemax:")
    for qb in range(2): a(f"v_mov_b32 v{WD+2+qb}, v{WD+qb}")
    a("s_nop 1")
    for qb in range(2): a(f"v_permlane32_swap_b32 v{WD+qb}, v{WD+2+qb}")
    for qb in range(2): a(f"v_max_f32 v{WD+qb}, v{WD+qb}, v{WD+2+qb}")
    for qb in range(2):
        for e in range(16): a(f"v_sub_f32 v{NM0+16*qb+e}, 0, v{WD+qb}")
    for e in range(16): a(f"v_mov_b32 v{S1+e}, {f2u(-1e30) if e >= 6 else 0}")
    for e in range(8): a(f"v_mov_b32 v{P1+e}, 0")
    for e in range(32): a(f"v_accvgpr_write_b32 a{VF+e}, 0")
    a(f"v_mov_b32 v{L0}, 0\nv_mov_b32 v{L1}, 0\ns_mov_b32 s30, 8")
    def sm(g):
        r = []
        for qb, g0 in ((0, 10), (1, 26)):
            s, p, l = S0 + 16*qb, P0 + 8*qb, L0 + qb
            j = (g - g0) % 32
            if 2 <= j <= 16 and j % 2 == 0: r.append(f"v_cvt_pk_bf16_f32 v{p+j//2-1}, v{s+j-2}, v{s+j-1}")
            if j < 16: r.append(f"v_exp_f32 v{s+j}, v{s+j}")
            if 1 <= j <= 16: r.append(f"v_add_f32 v{l}, v{l}, v{s+j-1}")
        return r
    def mf(g):
        grp, i = g // 8, g % 8
        if grp % 2 == 0:
            qb = grp // 2; s = vr(S0+16*qb, 16)
            return f"{MF} {s}, {ar(KF+4*i,4)}, {ar(QA+32*qb+4*i,4)}, {s if i else vr(NM0+16*qb,16)}"
        qb = 1 if grp == 1 else 0; o = vr(qb*64 + (i%4)*16, 16)
        return f"{MF} {o}, {ar(VF+4*i,4)}, {vr(P0+8*qb+4*(i//4),4)}, {o}"
    def step(a, sl):
        d = dmaKV(); rv = [rdV(sl, f, u) for f in range(8) for u in range(2)]; rk = [rdK((sl+1) % 4, ks) for ks in range(8)]
        ds = {g: [] for g in range(32)}
        vg = [8, 9, 10, 11, 12, 13, 13, 14, 15, 15, 16, 17, 18, 19, 20, 21]
        for x, g in zip(rv, vg): ds[g].append(x)
        for i, x in enumerate(rk): ds[22 + i].append(x)
        for g in range(32):
            if g == 0: a("s_waitcnt lgkmcnt(4)")
            if g == 4: a(f"s_waitcnt vmcnt({2*n}) lgkmcnt(0)\ns_barrier")
            if g == 24: a("s_waitcnt lgkmcnt(10)")
            if g == 28: a("s_waitcnt lgkmcnt(6)")
            a(mf(g))
            for x in sm(g) + ds[g]: a(x)
            if 4 <= g < 4 + n: a(d[g-4])
    a(f"L1_{tg}_loop:")
    for sl in range(4): step(a, sl)
    a(f"s_sub_u32 s30, s30, 1\ns_cmp_lg_u32 s30, 0\ns_cbranch_scc1 L1_{tg}_loop")
    t = Asm(); step(t, 3); step(t, 0); assert hazard.check(t.l) == 0
    if ST: stamp(a, 4, WD+4)
    for g in range(11):
        for x in sm(g):
            if not (g == 10 and x.startswith("v_exp")): a(x)
        if g < 10: a("s_nop 0") if g % 2 else None
    for qb in range(2): a(f"v_mov_b32 v{WD+qb}, v{L0+qb}")
    a(mf(8) + "\n" + mf(9))
    for qb in range(2): a(f"v_permlane32_swap_b32 v{L0+qb}, v{WD+qb}")
    for qb in range(2): a(f"v_add_f32 v{L0+qb}, v{L0+qb}, v{WD+qb}")
    a(f"""s_mov_b32 s29, {f2u(2.0**40)}
    v_cmp_nge_f32 vcc, s29, v{L0}
    v_cmp_nge_f32 s[62:63], s29, v{L1}
    {mf(10)}
    {mf(11)}
    s_or_b64 vcc, vcc, s[62:63]
    s_cselect_b32 s29, 1, 0
    s_lshl_b32 s61, s20, 2
    s_add_u32 s61, s61, {XLDS}
    v_mov_b32 v{WD}, s29
    v_mov_b32 v{WD+1}, s61
    ds_write_b32 v{WD+1}, v{WD}
    v_mov_b32 v{WD+1}, {XLDS}
    {mf(12)}
    {mf(13)}
    s_waitcnt lgkmcnt(0)
    s_barrier
    ds_read_b128 {vr(WD+2,4)}, v{WD+1}
    {mf(14)}
    {mf(15)}
    v_rcp_f32 v{L0}, v{L0}
    v_rcp_f32 v{L1}, v{L1}""")
    a(f"""s_mul_i32 s29, s24, 112
    s_lshl_b32 s61, s22, 6
    v_and_b32 v{WD+6}, 31, v{LANE}
    v_add_u32 v{WD+6}, s61, v{WD+6}
    v_and_b32 v{WD+7}, 32, v{LANE}""")
    for qb in range(2):
        r = WD + 8 + qb
        a(f"""v_add_u32 v{T}, {32*qb}, v{WD+6}
        v_cmp_gt_u32 vcc, 112, v{T}
        v_add_u32 v{T}, s29, v{T}
        v_and_b32 v{r}, 31, v{T}
        v_add_lshl_u32 v{r}, v{r}, v{WD+7}, 4
        v_lshrrev_b32 v{T}, 5, v{T}
        v_lshl_add_u32 v{r}, v{T}, 18, v{r}
        v_mov_b32 v{T}, 0x40000000
        v_cndmask_b32 v{r}, v{T}, v{r}, vcc""")
    a(f"""s_waitcnt lgkmcnt(0)
    v_or3_b32 v{WD+2}, v{WD+2}, v{WD+3}, v{WD+4}
    v_or_b32 v{WD+2}, v{WD+2}, v{WD+5}
    s_movk_i32 s61, 4096
    v_readfirstlane_b32 s29, v{WD+2}
    s_nop 1
    s_andn2_b32 s29, s29, s31
    s_cbranch_scc1 L1_{tg}_fallback""")
    for qb in range(2):
        for dt in range(4):
            for t_ in range(2):
                b = qb*64 + dt*16 + 8*t_
                for e in range(8): a(f"v_mul_f32 v{b+e}, v{L0+qb}, v{b+e}")
                for e in range(4): a(f"v_cvt_pk_bf16_f32 v{b+e}, v{b+2*e}, v{b+2*e+1}")
                a(f"buffer_store_dwordx4 {vr(b,4)}, v{WD+8+qb}, s[16:19], {'s61' if dt >= 2 else '0'} offen offset:{((2*dt+t_)%4)*1024} {OPT['ofl']}")
    if ST: a("s_waitcnt vmcnt(0)"); stamp(a, 5, WD+4)
    a("s_waitcnt vmcnt(0)\ns_endpgm")
    a(f"""L1_{tg}_fallback:
    s_mov_b32 s31, 1
    s_mov_b32 s26, s59
    s_mov_b32 s14, 0x40000
    s_mov_b32 s30, 32
    v_mov_b32 v{WD}, 0xff800000
    v_mov_b32 v{WD+1}, 0xff800000
    L1_{tg}_maxloop:
    s_waitcnt vmcnt(0)
    s_barrier
    s_mov_b32 s27, 0""")
    for x in dmaKV(False): a(x)
    a("s_waitcnt vmcnt(0)\ns_barrier")
    qk_plain(); a("s_nop 7"); maxacc(False)
    a(f"""s_sub_u32 s30, s30, 1
    s_cmp_lg_u32 s30, 0
    s_cbranch_scc1 L1_{tg}_maxloop
    s_barrier
    s_mov_b32 s26, s59
    s_mov_b32 s27, 0""")
    for i in range(3):
        for x in dmaKV(False): a(x)
    a(f"s_cmp_lg_u32 s22, 0\ns_cbranch_scc1 L1_{tg}_nok3b")
    for x in dmaKV(False): a(x)
    a(f"L1_{tg}_nok3b:\ns_waitcnt vmcnt({3*n})\ns_barrier")
    for ks in range(8): a(rdK(0, ks))
    for i in range(128): a(f"v_mov_b32 v{i}, 0")
    a(f"s_waitcnt lgkmcnt(0)\ns_branch L1_{tg}_havemax")

def k2(a, label):
    D = OPT["D2"]; NS = 8
    kernel_begin(a, label)
    a(f"""s_cmp_ge_u32 s2, 256
    s_cbranch_scc1 L2_end
    s_and_b32 s20, s2, 1
    s_lshl_b32 s20, s20, 5
    s_lshr_b32 s21, s2, 3
    s_add_u32 s20, s20, s21
    s_cmp_ge_u32 s20, 63
    s_cbranch_scc1 L2_end
    s_load_dwordx2 s[36:37], s[0:1], 32
    s_load_dwordx4 s[40:43], s[0:1], 72
    s_load_dwordx2 s[56:57], s[0:1], 96
    v_lshrrev_b32 v1, 6, v0
    v_and_b32 v2, 63, v0
    v_readfirstlane_b32 s26, v1
    s_mul_i32 s21, s20, 37
    s_lshr_b32 s21, s21, 8
    s_mul_i32 s22, s21, 7
    s_sub_u32 s22, s20, s22
    s_bfe_u32 s23, s2, 0x10001
    s_mul_i32 s23, s23, 7
    s_add_u32 s22, s22, s23
    s_bfe_u32 s23, s2, 0x10002""")
    a(f"""v_lshrrev_b32 v3, 3, v2
    v_mul_u32_u24 v3, 1152, v3
    v_bfe_u32 v4, v2, 4, 1
    v_lshlrev_b32 v4, 2, v4
    v_and_b32 v5, 7, v2
    v_xor_b32 v4, v4, v5
    v_lshl_add_u32 v10, v4, 4, v3
    v_add_u32 v11, {9216-1024}, v10
    v_add_u32 v12, {2*(9216-1024)}, v10
    v_add_u32 v13, {3*(9216-1024)}, v10
    v_lshlrev_b32 v14, 4, v2
    v_add_u32 v15, 0x40000, v14
    s_lshl_b32 s28, s26, 15
    s_waitcnt lgkmcnt(0)""")
    if ST: stamp_setup(a, 0x2000000, 56); stamp(a, 6, 20)
    a(f"""s_cmp_eq_u32 s23, 0
    s_cselect_b32 s4, s36, s40
    s_cselect_b32 s5, s37, s41
    s_mul_i32 s29, s26, {1024*1152}
    s_lshl_b32 s30, s21, 7
    s_add_u32 s29, s29, s30
    s_add_u32 s4, s4, s29
    s_addc_u32 s5, s5, 0
    s_sub_u32 s6, {4096*1152}, s29
    s_mov_b32 s7, 0x20000
    s_mul_i32 s29, s23, {OBR}
    s_lshl_b32 s30, s22, 19
    s_add_u32 s29, s29, s30
    s_lshl_b32 s30, s26, 16
    s_add_u32 s29, s29, s30
    s_add_u32 s8, s56, s29
    s_addc_u32 s9, s57, 0
    s_sub_u32 s10, {2*OBR}, s29
    s_mov_b32 s11, 0x20000""")
    OF = 64
    vm = Q()
    def loads(st):
        r = []; sl = st % NS
        for p in range(4):
            pre = f"s_add_u32 m0, s28, {sl*4096}\ns_mov_b32 s29, {st*32*1152}\ns_mov_b32 s30, {st*2048}\n" if p == 0 else ""
            r.append(pre + f"buffer_load_dwordx4 v{10+p}, s[4:7], s29 offen offset:{p*1024} {OPT['wofl']} lds"); vm.issue(st)
        for ks in range(2):
            for rb in range(2):
                r.append(f"buffer_load_dwordx4 {vr(OF+sl*16+(ks*2+rb)*4,4)}, v{14+rb}, s[8:11], s30 offen offset:{ks*1024} {OPT['o2fl']}"); vm.issue(st)
        return r
    for st in range(D):
        for x in loads(st): a(x)
    a(f"""v_bfe_u32 v3, v2, 2, 2
    v_lshrrev_b32 v4, 5, v2
    v_lshl_add_u32 v3, v4, 2, v3
    v_lshl_add_u32 v3, v3, 7, s28
    v_bfe_u32 v4, v2, 4, 1
    v_lshl_add_u32 v3, v4, 5, v3
    v_and_b32 v4, 3, v2
    v_lshl_add_u32 v3, v4, 3, v3
    v_bfe_u32 v4, v2, 3, 1
    v_lshl_add_u32 v16, v4, 6, v3
    v_xor_b32 v17, 64, v16""")
    WF = 24
    def reads(st):
        return [f"ds_read_b64_tr_b16 {vr(WF+(st%2)*16+(ks*2+nt)*4+2*u,2)}, v{16+nt} offset:{(st%NS)*4096 + (16*ks+8*u)*128}"
                for ks in range(2) for nt in range(2) for u in range(2)]
    a(f"s_waitcnt vmcnt({vm.need({0})})")
    for x in reads(0): a(x)
    for st in range(32):
        w = vm.need({st + 1}) if st < 31 else None
        a("s_waitcnt lgkmcnt(0)" + (f" vmcnt({w})" if w is not None else ""))
        rd = reads(st + 1) if st < 31 else []
        ld = loads(st + D) if st + D < 32 else []
        for g in range(8):
            ks, nt, rb = g // 4, (g // 2) % 2, g % 2; acc = ar((rb*2+nt)*16, 16)
            a(f"{MF} {acc}, {vr(WF+(st%2)*16+(ks*2+nt)*4,4)}, {vr(OF+(st%NS)*16+(ks*2+rb)*4,4)}, {acc if st or ks else 0}")
            for x in rd[2*g:2*g+2] + ld[g:g+1]: a(x)
    a(f"""s_mul_i32 s29, s26, {64*272}
    v_and_b32 v3, 31, v2
    v_mul_u32_u24 v3, 272, v3
    v_lshrrev_b32 v4, 5, v2
    v_lshl_add_u32 v3, v4, 4, v3
    v_add_u32 v3, s29, v3
    v_lshrrev_b32 v5, 3, v0
    v_and_b32 v6, 7, v0
    v_mul_u32_u24 v4, 272, v5
    v_lshl_add_u32 v4, v6, 5, v4
    s_lshl_b32 s29, s22, 6
    v_add_u32 v5, s29, v5
    v_mul_u32_u24 v5, 2304, v5
    v_lshl_add_u32 v5, v6, 4, v5
    s_mul_i32 s29, s23, 1152
    s_lshl_b32 s30, s21, 7
    s_add_u32 s29, s29, s30
    s_add_u32 s30, s29, {32*2304}
    s_mov_b32 s12, s42
    s_mov_b32 s13, s43
    s_mov_b32 s14, {896*2304}
    s_mov_b32 s15, 0x20000
    s_barrier""")
    for rb in range(2):
        for nt in range(2):
            for j in range(4): a(f"ds_write_b128 v3, {ar((rb*2+nt)*16+4*j,4)} offset:{rb*32*272 + (32*nt+8*j)*4}")
    a("s_waitcnt lgkmcnt(0)\ns_barrier")
    for i in range(2):
        for w in range(4):
            for c in range(2): a(f"ds_read_b128 {vr(64+i*32+w*8+c*4,4)}, v4 offset:{w*64*272 + i*32*272 + c*16}")
        if i == 0: continue
    for i in range(2):
        b = 64 + i*32
        a(f"s_waitcnt lgkmcnt({8*(1-i)})")
        for e in range(8): a(f"v_add_f32 v{b+e}, v{b+e}, v{b+8+e}\nv_add_f32 v{b+16+e}, v{b+16+e}, v{b+24+e}")
        for e in range(8): a(f"v_add_f32 v{b+e}, v{b+e}, v{b+16+e}")
        for e in range(4): a(f"v_cvt_pk_bf16_f32 v{b+e}, v{b+2*e}, v{b+2*e+1}")
        a(f"buffer_store_dwordx4 {vr(b,4)}, v5, s[12:15], s{29+i} offen")
    if ST: a("s_waitcnt vmcnt(0)"); stamp(a, 7, 20)
    a("L2_end:\ns_endpgm")

a = Asm(); K1, K2 = "attn_kernel", "oproj_kernel"
k1(a, K1); k2(a, K2)
assert hazard.check(a.l) == 0
L = [(K1, 256, 256, 163840), (K2, 256, 256, 131072)]
if OPT["only"]: L = [L[OPT["only"] - 1]]
open(sys.argv[1], "w").write(finish(L, a.text(), [descriptor(K1, 384, 256), descriptor(K2, 320, 256)]))
```
